```python
import torch

def _softmax(x, axis=-1):
    return torch.softmax(x, dim=axis)
def _gelu(x):
    return torch.nn.functional.gelu(x, approximate="tanh")
def _silu(x):
    return torch.nn.functional.silu(x)
def _sigmoid(x):
    return torch.sigmoid(x)
def _layernorm(x, axis=-1, eps=1e-5):
    m = x.mean(dim=axis, keepdim=True)
    v = x.var(dim=axis, keepdim=True, unbiased=False)
    return (x - m) / torch.sqrt(v + eps)
def _scatter_add(tgt, idx, src, axis=0):
    return tgt.clone().index_add_(axis, idx, src)
def _segment_sum(src, seg, n):
    out = torch.zeros((n,) + src.shape[1:], dtype=src.dtype)
    return out.index_add_(0, seg, src)
def _pad(x, pw):
    flat = tuple(v for pair in reversed(pw) for v in pair)
    return torch.nn.functional.pad(x, flat)

kernel_name = 'concat_heads__softmax_full_mha__softmax_full_mha__prompt'

def setup_inputs():

    _w = (lambda a: (lambda t: t.to(torch.bfloat16) if t.is_floating_point() else t)(torch.as_tensor(a)))
    def _A_setup():
        B, S, D = 1, 2048, 512
        return {
            "x": _w((lambda *s: torch.randn(*s, dtype=torch.bfloat16) * 0.2)(B, S, D)),
            "wqkv": _w((lambda *s: torch.randn(*s, dtype=torch.bfloat16) * 0.2)(D, 3 * D)),
            "wo": _w((lambda *s: torch.randn(*s, dtype=torch.bfloat16) * 0.05)(D, D)),
        }
    _A_in = _A_setup()

    def _B_setup():
        B, S, D = 1, 2048, 512
        return {
            "x": _w((lambda *s: torch.randn(*s, dtype=torch.bfloat16) * 0.2)(B, S, D)),
            "wqkv": _w((lambda *s: torch.randn(*s, dtype=torch.bfloat16) * 0.2)(D, 3 * D)),
            "wo": _w((lambda *s: torch.randn(*s, dtype=torch.bfloat16) * 0.05)(D, D)),
        }
    _B_in = _B_setup()

    return {
        "A_x": _A_in["x"],
        "A_wqkv": _A_in["wqkv"],
        "A_wo": _A_in["wo"],
        "B_x": _B_in["x"],
        "B_wqkv": _B_in["wqkv"],
        "B_wo": _B_in["wo"],
    }

def reference(A_x, A_wqkv, A_wo, B_x, B_wqkv, B_wo):
    def _A_ref(x, wqkv, wo):
        B, S, D = x.shape
        H = 32; Dh = D // H
        qkv = (lambda x, *d: x.permute(*d))((x @ wqkv).reshape(B, S, 3, H, Dh), 2, 0, 3, 1, 4)
        q, k, v = qkv[0], qkv[1], qkv[2]
        scale = Dh ** -0.5
        scores = torch.einsum("bhqd,bhkd->bhqk", q, k) * scale
        p = _softmax(scores, axis=-1)
        o = torch.einsum("bhqk,bhkd->bhqd", p, v)
        return (lambda x, *d: x.permute(*d))(o, 0, 2, 1, 3).reshape(B, S, D) @ wo

    def _B_ref(x, wqkv, wo):
        B, S, D = x.shape
        H = 32; Dh = D // H
        qkv = (lambda x, *d: x.permute(*d))((x @ wqkv).reshape(B, S, 3, H, Dh), 2, 0, 3, 1, 4)
        q, k, v = qkv[0], qkv[1], qkv[2]
        scale = Dh ** -0.5
        scores = torch.einsum("bhqd,bhkd->bhqk", q, k) * scale
        p = _softmax(scores, axis=-1)
        o = torch.einsum("bhqk,bhkd->bhqd", p, v)
        return (lambda x, *d: x.permute(*d))(o, 0, 2, 1, 3).reshape(B, S, D) @ wo

    a = _A_ref(A_x, A_wqkv, A_wo)
    b = _B_ref(B_x, B_wqkv, B_wo)
    return torch.concatenate([a, b], axis=-1)
```

```python
import sys
NAME = "concat_heads__softmax_full_mha__softmax_full_mha__prompt"

WS_Q  = 0
WS_KV = 4 << 20
WS_O  = 12 << 20
WS_BYTES = 16 << 20
QSCALE = 0.25 * 1.4426950408889634
import struct
def f32(x): return struct.unpack("<I", struct.pack("<f", x))[0]

class Asm:
    def __init__(self): self.l = []
    def __call__(self, s):
        for line in s.strip("\n").split("\n"):
            self.l.append("    " + line.strip() if not line.strip().endswith(":") and not line.strip().startswith(".") else line.strip())
    def text(self): return "\n".join(self.l) + "\n"

def srd(a, d, lo, hi, nbytes):
    a(f"s_mov_b32 s{d}, s{lo}\ns_mov_b32 s{d+1}, s{hi}\ns_mov_b32 s{d+2}, {nbytes}\ns_mov_b32 s{d+3}, 0x00020000")

def decode_wg(a):
    a("""
    s_and_b32 s7, s2, 7
    s_lshr_b32 s8, s2, 3
    s_lshr_b32 s4, s7, 2
    s_and_b32 s5, s7, 1
    s_lshl_b32 s5, s5, 3
    s_and_b32 s9, s8, 7
    s_or_b32 s5, s5, s9
    s_bfe_u32 s6, s7, 0x10001
    s_lshl_b32 s6, s6, 2
    s_lshr_b32 s9, s8, 3
    s_or_b32 s6, s6, s9
    """)

def kd(name, vgpr, sgpr=102):
    acc = (vgpr + 3)//4*4
    return f""".section .rodata,"a"
.p2align 6
.amdhsa_kernel {name}
  .amdhsa_next_free_vgpr {vgpr}
  .amdhsa_next_free_sgpr {sgpr}
  .amdhsa_accum_offset {acc}
  .amdhsa_group_segment_fixed_size 0
  .amdhsa_kernarg_size 72
  .amdhsa_user_sgpr_count 2
  .amdhsa_user_sgpr_kernarg_segment_ptr 1
  .amdhsa_system_sgpr_workgroup_id_x 1
.end_amdhsa_kernel
.text
"""

def header(name):
    return f".globl {name}\n.p2align 8\n.type {name},@function\n{name}:\n"

SLOT1 = 45056
def gen_k1():
    a = Asm()
    a("s_cmp_ge_u32 s2, 256\ns_cbranch_scc1 K1_end")
    a("s_load_dwordx16 s[16:31], s[0:1], 0\ns_load_dwordx2 s[32:33], s[0:1], 64")
    decode_wg(a)
    a("""
    v_lshrrev_b32 v1, 6, v0
    v_and_b32 v2, 63, v0
    s_nop 0
    v_readfirstlane_b32 s10, v1
    """)
    a("""
    v_lshrrev_b32 v3, 3, v2
    v_lshlrev_b32 v3, 10, v3
    v_and_b32 v8, 7, v2
    v_lshrrev_b32 v9, 4, v2
    v_xor_b32 v10, v8, v9
    v_lshl_add_u32 v4, v10, 4, v3
    v_xor_b32 v10, 4, v10
    v_lshl_add_u32 v5, v10, 4, v3
    v_add_u32 v5, 7168, v5
    v_add_u32 v6, 14336, v4
    v_add_u32 v7, 14336, v5
    """)
    a("""
    s_mul_i32 s11, s10, 24
    v_lshrrev_b32 v3, 2, v2
    v_add_u32 v3, s11, v3
    v_and_b32 v10, 3, v2
    v_lshlrev_b32 v10, 4, v10
    v_and_b32 v11, 63, v3
    v_mul_u32_u24 v11, 3072, v11
    v_lshrrev_b32 v12, 6, v3
    v_lshl_add_u32 v11, v12, 10, v11
    v_add_u32 v8, v11, v10
    v_add_u32 v3, 16, v3
    v_and_b32 v11, 63, v3
    v_mul_u32_u24 v11, 3072, v11
    v_lshrrev_b32 v12, 6, v3
    v_lshl_add_u32 v11, v12, 10, v11
    v_add_u32 v9, v11, v10
    v_subrev_u32 v9, 1024, v9
    """)
    a("""
    v_and_b32 v3, 31, v2
    v_lshrrev_b32 v12, 5, v2
    v_bfe_u32 v13, v3, 1, 3
    v_xor_b32 v13, v13, v12
    v_lshlrev_b32 v13, 4, v13
    v_lshl_add_u32 v10, v3, 7, v13
    s_lshl_b32 s11, s10, 12
    v_add_u32 v10, s11, v10
    v_lshlrev_b32 v11, 9, v12
    v_bfe_u32 v13, v2, 2, 2
    v_lshl_add_u32 v11, v13, 6, v11
    v_bfe_u32 v13, v2, 4, 1
    v_lshl_add_u32 v11, v13, 5, v11
    v_and_b32 v13, 3, v2
    v_lshl_add_u32 v11, v13, 3, v11
    v_add_u32 v11, 32768, v11
    """)
    a("s_waitcnt lgkmcnt(0)")
    a("""
    s_cmp_eq_u32 s4, 0
    s_cselect_b32 s34, s16, s22
    s_cselect_b32 s35, s17, s23
    s_cselect_b32 s36, s18, s24
    s_cselect_b32 s37, s19, s25
    """)
    srd(a, 40, 34, 35, 2048*512*2)
    srd(a, 44, 36, 37, 512*1536*2)
    srd(a, 48, 32, 33, WS_BYTES)
    a("""
    s_lshl_b32 s52, s6, 18
    s_lshl_b32 s11, s10, 15
    s_add_u32 s52, s52, s11
    s_lshl_b32 s53, s5, 6
    s_lshl_b32 s54, s10, 12
    s_mul_i32 s55, s10, 1536
    s_add_u32 s55, s55, 32768
    """)
    def issue(stage):
        slot = (stage % 3) * SLOT1
        a(f"s_add_u32 m0, s54, {slot}")
        a(f"s_add_u32 s56, s52, {stage*128}")
        for q in range(4):
            a(f"buffer_load_dwordx4 v{4+q}, s[40:43], s56 offen offset:{q*1024} lds")
        a(f"s_add_u32 m0, s55, {slot}")
        a(f"s_add_u32 s56, s53, {stage*64*3072}")
        a(f"buffer_load_dwordx4 v8, s[44:47], s56 offen lds")
        a("s_mov_b32 exec_hi, 0")
        a(f"buffer_load_dwordx4 v9, s[44:47], s56 offen offset:1024 lds")
        a("s_mov_b32 exec_hi, -1")
    issue(0); issue(1)
    QA, KA, VA = 32, 48, 64
    for r in range(32, 80): a(f"v_mov_b32 v{r}, 0")
    FR = 80
    for s in range(8):
        slot = (s % 3) * SLOT1
        a(f"s_waitcnt vmcnt({6 if s < 7 else 0})")
        a("s_barrier")
        if s + 2 < 8: issue(s + 2)
        a(f"v_add_u32 v12, {slot}, v10")
        a(f"v_add_u32 v16, {slot}, v11")
        a("v_xor_b32 v13, 32, v12\nv_xor_b32 v14, 64, v12\nv_xor_b32 v15, 0x60, v12")
        def reads(j):
            b = FR + 16*j
            a(f"ds_read_b128 v[{b}:{b+3}], v{12+j}")
            for seg in range(3):
                o = seg*4096 + j*1024
                a(f"ds_read_b64_tr_b16 v[{b+4+4*seg}:{b+5+4*seg}], v16 offset:{o}")
                a(f"ds_read_b64_tr_b16 v[{b+6+4*seg}:{b+7+4*seg}], v16 offset:{o+256}")
        reads(0); reads(1)
        for j in range(4):
            b = FR + 16*j
            a(f"s_waitcnt lgkmcnt({7 if j < 3 else 0})")
            a(f"v_mfma_f32_32x32x16_bf16 v[{QA}:{QA+15}], v[{b+4}:{b+7}], v[{b}:{b+3}], v[{QA}:{QA+15}]")
            a(f"v_mfma_f32_32x32x16_bf16 v[{KA}:{KA+15}], v[{b+8}:{b+11}], v[{b}:{b+3}], v[{KA}:{KA+15}]")
            a(f"v_mfma_f32_32x32x16_bf16 v[{VA}:{VA+15}], v[{b}:{b+3}], v[{b+12}:{b+15}], v[{VA}:{VA+15}]")
            if j + 2 < 4: reads(j + 2)
    a("""
    s_lshl_b32 s11, s4, 4
    s_add_u32 s11, s11, s5
    s_lshl_b32 s11, s11, 3
    s_add_u32 s11, s11, s6
    s_lshl_b32 s57, s11, 14
    s_lshl_b32 s12, s10, 11
    s_add_u32 s57, s57, s12
    s_lshl_b32 s58, s11, 15
    s_add_u32 s58, s58, s12
    """)
    a(f"s_add_u32 s58, s58, {WS_KV}")
    a(f"s_add_u32 s59, s58, 16384")
    a(f"s_mov_b32 s60, {f32(QSCALE):#x}")
    a("""
    v_lshlrev_b32 v4, 4, v2
    v_and_b32 v3, 0x33, v2
    v_bfe_u32 v12, v2, 2, 1
    v_lshl_or_b32 v3, v12, 3, v3
    v_bfe_u32 v12, v2, 3, 1
    v_lshl_or_b32 v3, v12, 2, v3
    v_lshlrev_b32 v5, 4, v3
    v_and_b32 v3, 15, v2
    v_lshlrev_b32 v6, 4, v3
    v_lshrrev_b32 v12, 5, v2
    v_lshl_add_u32 v6, v12, 8, v6
    v_bfe_u32 v12, v2, 4, 1
    v_lshl_add_u32 v6, v12, 14, v6
    """)
    a("s_nop 7")
    for r in range(16): a(f"v_mul_f32 v{QA+r}, s60, v{QA+r}")
    for i in range(8): a(f"v_cvt_pk_bf16_f32 v{80+i}, v{QA+2*i}, v{QA+2*i+1}")
    for i in range(8): a(f"v_cvt_pk_bf16_f32 v{88+i}, v{KA+2*i}, v{KA+2*i+1}")
    for i in range(8): a(f"v_cvt_pk_bf16_f32 v{96+i}, v{VA+2*i}, v{VA+2*i+1}")
    a("""
    buffer_store_dwordx4 v[80:83], v4, s[48:51], s57 offen
    buffer_store_dwordx4 v[84:87], v4, s[48:51], s57 offen offset:1024
    buffer_store_dwordx4 v[88:91], v5, s[48:51], s58 offen
    buffer_store_dwordx4 v[92:95], v5, s[48:51], s59 offen
    buffer_store_dwordx4 v[96:99], v6, s[48:51], s58 offen offset:1024
    buffer_store_dwordx4 v[100:103], v6, s[48:51], s58 offen offset:1536
    s_waitcnt vmcnt(0)
    K1_end:
    s_endpgm
    """)
    return header("qkv_kernel") + a.text(), kd("qkv_kernel", 144)

def gen_k2():
    a = Asm()
    a("s_cmp_ge_u32 s2, 256\ns_cbranch_scc1 K2_end")
    a("s_load_dwordx2 s[32:33], s[0:1], 64")
    decode_wg(a)
    a("""
    v_lshrrev_b32 v1, 6, v0
    v_and_b32 v2, 63, v0
    s_nop 0
    v_readfirstlane_b32 s10, v1
    v_lshlrev_b32 v4, 4, v2
    """)
    a("""
    v_and_b32 v3, 15, v2
    v_lshlrev_b32 v5, 4, v3
    v_lshrrev_b32 v12, 5, v2
    v_lshl_add_u32 v5, v12, 8, v5
    v_add_u32 v5, 1024, v5
    s_waitcnt lgkmcnt(0)
    """)
    srd(a, 48, 32, 33, WS_BYTES)
    a("""
    s_lshl_b32 s11, s4, 4
    s_add_u32 s11, s11, s5
    s_lshl_b32 s13, s11, 18
    s_lshl_b32 s11, s11, 3
    s_add_u32 s11, s11, s6
    s_lshl_b32 s57, s11, 14
    s_lshl_b32 s12, s10, 11
    s_add_u32 s57, s57, s12
    s_lshl_b32 s54, s10, 12
    s_add_u32 s13, s13, s54
    """)
    a(f"s_add_u32 s13, s13, {WS_KV}")
    a("s_mov_b32 s62, 0x0000ffff\ns_mov_b32 s63, 0x0000ffff")
    Q = [8, 12]; KF = [16, 20]; V1 = [24, 32]; V2 = [28, 36]; IDX = 40
    S = [48, 64]; BI = [80, 96]; O = [112, 128]
    AK, AV = 6, 7
    a(f"buffer_load_dwordx4 v[8:11], v4, s[48:51], s57 offen")
    a(f"buffer_load_dwordx4 v[12:15], v4, s[48:51], s57 offen offset:1024")
    def issue_chunk(nreg_expr_add, slot_s):
        a(f"s_add_u32 s56, s6, s14")
        a(f"s_add_u32 s56, s56, {nreg_expr_add}")
        a("s_and_b32 s56, s56, 7")
        a("s_lshl_b32 s56, s56, 15")
        a("s_add_u32 s56, s56, s13")
        a(f"s_add_u32 m0, s54, {slot_s}")
        a("s_nop 0")
        for q in range(4):
            a(f"buffer_load_dwordx4 v4, s[48:51], s56 offen offset:{q*1024} lds")
    a("s_mov_b32 s14, 0")
    a("s_mov_b32 s64, 0\ns_mov_b32 s65, 32768\ns_mov_b32 s66, 65536")
    a("s_mov_b32 s67, 0")
    issue_chunk(0, "s64"); issue_chunk(1, "s65")
    a(f"v_mov_b32 v{IDX}, 0xdddddddd")
    a("v_bfe_u32 v3, v2, 4, 1\nv_mul_u32_u24 v3, 0x3f80, v3\nv_lshl_or_b32 v3, v3, 16, v3")
    for r in range(24, 40): a(f"v_mov_b32 v{r}, v3")
    a("s_waitcnt vmcnt(4)\ns_barrier")
    a(f"ds_read_b128 v[16:19], v4\nds_read_b128 v[20:23], v4 offset:16384\ns_waitcnt lgkmcnt(0)")
    for e in range(2):
        a(f"v_mfma_f32_32x32x16_bf16 v[{S[e]}:{S[e]+15}], v[{KF[e]}:{KF[e]+3}], v[{Q[e]}:{Q[e]+3}], 0")
    a("s_nop 15")
    for e in range(2):
        s = S[e]
        a(f"v_max3_f32 v{43+e}, v{s}, v{s+1}, v{s+2}")
        for i in range(3, 15, 2): a(f"v_max3_f32 v{43+e}, v{43+e}, v{s+i}, v{s+i+1}")
        a(f"v_max_f32 v{43+e}, v{43+e}, v{s+15}")
    a("K2_setbias:")
    a("v_mov_b32 v45, v43\nv_mov_b32 v46, v44\ns_nop 1")
    a("v_permlane32_swap_b32 v43, v45\nv_permlane32_swap_b32 v44, v46\ns_nop 1")
    a("v_max_f32 v43, v43, v45\nv_max_f32 v44, v44, v46")
    for e in range(2):
        for r in range(16): a(f"v_sub_f32 v{BI[e]+r}, 0, v{43+e}")
        for r in range(16): a(f"v_mov_b32 v{O[e]+r}, 0")
    a(f"v_add_u32 v{AK}, s64, v4\nv_add_u32 v{AV}, s64, v5")
    a(f"ds_read_b128 v[16:19], v{AK}\nds_read_b128 v[20:23], v{AK} offset:16384")
    a("s_mov_b64 exec, s[62:63]")
    a(f"ds_read_b128 v[{V1[0]}:{V1[0]+3}], v{AV}\nds_read_b128 v[{V2[0]}:{V2[0]+3}], v{AV} offset:512")
    a("s_mov_b64 exec, -1")
    a("s_waitcnt lgkmcnt(0)")
    a(f"v_mfma_f32_32x32x16_bf16 v[{S[0]}:{S[0]+15}], v[{KF[0]}:{KF[0]+3}], v[{Q[0]}:{Q[0]+3}], v[{BI[0]}:{BI[0]+15}]")
    for r in range(8, 16): a(f"v_mov_b32 v{S[1]+r}, 0")
    a("s_nop 7")
    a(".p2align 6")
    a("K2_chunk:")
    for u in range(16):
        t, e = u // 2, u % 2
        o = 1 - e
        s = S[e]
        ex = lambda i: a(f"v_exp_f32 v{s+i}, v{s+i}")
        if u == 14:
            a("s_waitcnt vmcnt(0)\ns_barrier")
            a(f"v_add_u32 v41, s65, v4\nv_add_u32 v42, s65, v5")
            a("s_cmp_ge_u32 s14, 6\ns_cbranch_scc1 K2_noload")
            issue_chunk(2, "s66")
            a("K2_noload:")
        a("s_waitcnt lgkmcnt(0)")
        ex(0); ex(1)
        a(f"v_smfmac_f32_32x32x32_bf16 v[{O[o]}:{O[o]+15}], v[{V2[o]}:{V2[o]+3}], v[{S[o]+8}:{S[o]+15}], v{IDX}")
        u2 = u + 2
        if u2 < 16: a(f"ds_read_b128 v[{KF[e]}:{KF[e]+3}], v{AK} offset:{(u2%2)*16384 + (u2//2)*2048}")
        else:       a(f"ds_read_b128 v[{KF[e]}:{KF[e]+3}], v41 offset:{(u2%2)*16384}")
        u1 = u + 1
        a("s_mov_b64 exec, s[62:63]")
        if u1 < 16:
            off = (u1%2)*16384 + (u1//2)*2048; ar = AV
        else:
            off = 0; ar = 42
        a(f"ds_read_b128 v[{V1[o]}:{V1[o]+3}], v{ar} offset:{off}")
        a(f"ds_read_b128 v[{V2[o]}:{V2[o]+3}], v{ar} offset:{off+512}")
        a("s_mov_b64 exec, -1")
        ex(2); ex(3); ex(4)
        a(f"v_mfma_f32_32x32x16_bf16 v[{S[o]}:{S[o]+15}], v[{KF[o]}:{KF[o]+3}], v[{Q[o]}:{Q[o]+3}], v[{BI[o]}:{BI[o]+15}]")
        for i in range(5, 10): ex(i)
        a(f"v_smfmac_f32_32x32x32_bf16 v[{O[e]}:{O[e]+15}], v[{V1[e]}:{V1[e]+3}], v[{s}:{s+7}], v{IDX}")
        for i in range(10, 16): ex(i)
    a(f"v_mov_b32 v{AK}, v41\nv_mov_b32 v{AV}, v42")
    a("s_mov_b32 s68, s64\ns_mov_b32 s64, s65\ns_mov_b32 s65, s66\ns_mov_b32 s66, s68")
    a("s_add_u32 s14, s14, 1\ns_cmp_lt_u32 s14, 8\ns_cbranch_scc1 K2_chunk")
    a("s_nop 0")
    a(f"v_smfmac_f32_32x32x32_bf16 v[{O[1]}:{O[1]+15}], v[{V2[1]}:{V2[1]+3}], v[{S[1]+8}:{S[1]+15}], v{IDX}")
    a("s_waitcnt lgkmcnt(0)")
    a("s_nop 15")
    for e in range(2):
        a(f"v_rcp_f32 v{43+e}, v{O[e]+8}")
    a("s_nop 0")
    for e in range(2):
        for r in range(8): a(f"v_mul_f32 v{O[e]+r}, v{O[e]+r}, v{43+e}")
        for i in range(4): a(f"v_cvt_pk_bf16_f32 v{16+4*e+i}, v{O[e]+2*i}, v{O[e]+2*i+1}")
    a("""
    s_lshl_b32 s11, s4, 3
    s_add_u32 s11, s11, s6
    s_lshl_b32 s11, s11, 3
    s_add_u32 s11, s11, s10
    s_lshl_b32 s11, s11, 4
    s_add_u32 s11, s11, s5
    s_lshl_b32 s11, s11, 11
    """)
    a(f"s_add_u32 s11, s11, {WS_O}")
    a("""
    buffer_store_dwordx4 v[16:19], v4, s[48:51], s11 offen
    buffer_store_dwordx4 v[20:23], v4, s[48:51], s11 offen offset:1024
    s_waitcnt vmcnt(0)
    K2_end:
    s_endpgm
    """)
    return header("attn_kernel") + a.text(), kd("attn_kernel", 144)

def gen_k3():
    a = Asm()
    a("s_cmp_ge_u32 s2, 256\ns_cbranch_scc1 K3_end")
    a("s_load_dwordx16 s[16:31], s[0:1], 0\ns_load_dwordx2 s[32:33], s[0:1], 64")
    a("""
    s_and_b32 s7, s2, 7
    s_lshr_b32 s8, s2, 3
    s_lshr_b32 s4, s7, 2
    s_and_b32 s5, s7, 3
    s_lshl_b32 s5, s5, 2
    s_lshr_b32 s9, s8, 3
    s_or_b32 s5, s5, s9
    s_and_b32 s6, s8, 7
    v_lshrrev_b32 v1, 6, v0
    v_and_b32 v2, 63, v0
    s_nop 0
    v_readfirstlane_b32 s10, v1
    v_lshlrev_b32 v4, 4, v2
    """)
    a("""
    v_lshrrev_b32 v3, 2, v2
    v_lshlrev_b32 v3, 10, v3
    v_and_b32 v5, 3, v2
    v_lshl_add_u32 v5, v5, 4, v3
    """)
    a("""
    v_lshrrev_b32 v12, 5, v2
    v_lshlrev_b32 v6, 8, v12
    v_bfe_u32 v13, v2, 2, 2
    v_lshl_add_u32 v6, v13, 6, v6
    v_and_b32 v13, 1, v2
    v_lshl_add_u32 v6, v13, 5, v6
    v_bfe_u32 v13, v2, 1, 1
    v_lshl_add_u32 v6, v13, 3, v6
    v_bfe_u32 v13, v2, 4, 1
    v_lshl_add_u32 v6, v13, 4, v6
    v_add_u32 v7, 32768, v6
    s_waitcnt lgkmcnt(0)
    s_cmp_eq_u32 s4, 0
    s_cselect_b32 s34, s20, s26
    s_cselect_b32 s35, s21, s27
    """)
    srd(a, 40, 34, 35, 512*512*2)
    srd(a, 44, 28, 29, 2048*1024*2)
    srd(a, 48, 32, 33, WS_BYTES)
    a("""
    s_lshl_b32 s52, s10, 17
    s_lshl_b32 s11, s6, 7
    s_add_u32 s52, s52, s11
    s_lshl_b32 s54, s10, 13
    s_lshl_b32 s11, s4, 4
    s_add_u32 s11, s11, s5
    s_lshl_b32 s11, s11, 2
    s_add_u32 s11, s11, s10
    s_lshl_b32 s57, s11, 15
    """)
    a(f"s_add_u32 s57, s57, {WS_O}")
    for j in range(8):
        for nh in range(2):
            a(f"s_add_u32 m0, s54, {nh*32768 + j*1024}")
            a(f"s_add_u32 s56, s52, {j*16384 + nh*64}")
            a(f"buffer_load_dwordx4 v5, s[40:43], s56 offen lds")
    OF = 64
    for h in range(32):
        if h % 4 == 0: a(f"s_add_u32 s56, s57, {h*1024}")
        a(f"buffer_load_dwordx4 v[{OF+4*h}:{OF+4*h+3}], v4, s[48:51], s56 offen offset:{(h%4)*1024}")
    for r in range(16, 48): a(f"v_mov_b32 v{r}, 0")
    a("s_waitcnt vmcnt(32)\ns_barrier")
    WB = [48, 56]
    def reads(h):
        b = WB[h % 2]
        for nh in range(2):
            a(f"ds_read_b64_tr_b16 v[{b+4*nh}:{b+4*nh+1}], v{6+nh} offset:{h*1024}")
            a(f"ds_read_b64_tr_b16 v[{b+4*nh+2}:{b+4*nh+3}], v{6+nh} offset:{h*1024+512}")
    reads(0)
    for h in range(32):
        if h + 1 < 32: reads(h + 1)
        b = WB[h % 2]
        a(f"s_waitcnt vmcnt({31-h}) lgkmcnt({4 if h < 31 else 0})")
        for nh in range(2):
            a(f"v_mfma_f32_32x32x16_bf16 v[{16+16*nh}:{31+16*nh}], v[{b+4*nh}:{b+4*nh+3}], v[{OF+4*h}:{OF+4*h+3}], v[{16+16*nh}:{31+16*nh}]")
    a("""
    v_and_b32 v3, 31, v2
    v_lshlrev_b32 v3, 11, v3
    v_lshrrev_b32 v12, 5, v2
    v_lshl_add_u32 v3, v12, 5, v3
    s_lshl_b32 s11, s5, 2
    s_add_u32 s11, s11, s10
    s_lshl_b32 s11, s11, 16
    s_lshl_b32 s12, s4, 10
    s_add_u32 s11, s11, s12
    s_lshl_b32 s12, s6, 7
    s_add_u32 s11, s11, s12
    s_nop 7
    """)
    for i in range(16): a(f"v_cvt_pk_bf16_f32 v{64+i}, v{16+2*i}, v{17+2*i}")
    a("""
    buffer_store_dwordx4 v[64:67], v3, s[44:47], s11 offen
    buffer_store_dwordx4 v[68:71], v3, s[44:47], s11 offen offset:16
    buffer_store_dwordx4 v[72:75], v3, s[44:47], s11 offen offset:64
    buffer_store_dwordx4 v[76:79], v3, s[44:47], s11 offen offset:80
    s_waitcnt vmcnt(0)
    K3_end:
    s_endpgm
    """)
    return header("oproj_kernel") + a.text(), kd("oproj_kernel", 192)

out = []
out.append(f"; @launch kernel=qkv_kernel grid=(256,1,1) block=(512,1,1) lds={3*SLOT1}\n")
out.append(f"; @launch kernel=attn_kernel grid=(256,1,1) block=(512,1,1) lds={3*32768}\n")
out.append(f"; @launch kernel=oproj_kernel grid=(256,1,1) block=(256,1,1) lds=65536\n")
out.append('.amdgcn_target "amdgcn-amd-amdhsa--gfx950"\n.text\n')
kds = []
for g in (gen_k1, gen_k2, gen_k3):
    t, k = g(); out.append(t); kds.append(k)
out += kds
path = sys.argv[1] if len(sys.argv) > 1 else f"cdna_kernels/{NAME}.s"
open(path, "w").write("".join(out))
```
